```python
import torch

def _softmax(x, axis=-1):
    return torch.softmax(x, dim=axis)
def _gelu(x):
    return torch.nn.functional.gelu(x, approximate="tanh")
def _silu(x):
    return torch.nn.functional.silu(x)
def _sigmoid(x):
    return torch.sigmoid(x)
def _layernorm(x, axis=-1, eps=1e-5):
    m = x.mean(dim=axis, keepdim=True)
    v = x.var(dim=axis, keepdim=True, unbiased=False)
    return (x - m) / torch.sqrt(v + eps)
def _scatter_add(tgt, idx, src, axis=0):
    return tgt.clone().index_add_(axis, idx, src)
def _segment_sum(src, seg, n):
    out = torch.zeros((n,) + src.shape[1:], dtype=src.dtype)
    return out.index_add_(0, seg, src)
def _pad(x, pw):
    flat = tuple(v for pair in reversed(pw) for v in pair)
    return torch.nn.functional.pad(x, flat)

kernel_name = 'recurrent_scan__sliding_block_cached__glu_gated_swiglu__decode'

def setup_inputs():

    _w = (lambda a: (lambda t: t.to(torch.bfloat16) if t.is_floating_point() else t)(torch.as_tensor(a)))
    def _A_setup():
        B, Sq, D = 1, 1, 576
        Hq, Hkv, Sk, Dh = 32, 16, 65536, 128
        assert Hq % Hkv == 0, (Hq, Hkv)
        return {
            "x": _w((lambda *s: torch.randn(*s, dtype=torch.bfloat16) * 0.05)(B, Sq, D)),
            "k_cache": _w((lambda *s: torch.randn(*s, dtype=torch.bfloat16) * 3.2)(B, Hkv, Sk, Dh)),
            "v_cache": _w((lambda *s: torch.randn(*s, dtype=torch.bfloat16) * 3.2)(B, Hkv, Sk, Dh)),
            "wq": _w((lambda *s: torch.randn(*s, dtype=torch.bfloat16) * 3.2)(D, Hq * Dh) * (D ** -0.5)),
            "wo": _w((lambda *s: torch.randn(*s, dtype=torch.bfloat16) * 3.2)(Hq * Dh, D) * ((Hq * Dh) ** -0.5)),
        }
    _A_in = _A_setup()

    def _B_setup():
        B, S, D, F = 1, 1, 576, 4608
        return {
            "x": _w((lambda *s: torch.randn(*s, dtype=torch.bfloat16) * 0.05)(B, S, D)),
            "w1": _w((lambda *s: torch.randn(*s, dtype=torch.bfloat16) * 0.4)(D, F) * (2.0 / D) ** 0.5),
            "w3": _w((lambda *s: torch.randn(*s, dtype=torch.bfloat16) * 0.4)(D, F) * (2.0 / D) ** 0.5),
            "w2": _w((lambda *s: torch.randn(*s, dtype=torch.bfloat16) * 0.4)(F, D) * (2.0 / F) ** 0.5),
        }
    _B_in = _B_setup()

    return {
        "A_x": _A_in["x"],
        "A_k_cache": _A_in["k_cache"],
        "A_v_cache": _A_in["v_cache"],
        "A_wq": _A_in["wq"],
        "A_wo": _A_in["wo"],
        "B_x": _B_in["x"],
        "B_w1": _B_in["w1"],
        "B_w3": _B_in["w3"],
        "B_w2": _B_in["w2"],
    }

def reference(A_x, A_k_cache, A_v_cache, A_wq, A_wo, B_x, B_w1, B_w3, B_w2):
    def _A_ref(x, k_cache, v_cache, wq, wo):
        B, Sq, D = x.shape
        Hq, Dh = 32, 128
        Hkv, Sk = k_cache.shape[1], k_cache.shape[2]
        W = min(4096, max(256, Sk // 4))
        rep = Hq // Hkv
        q = (lambda x, *d: x.permute(*d))((x @ wq).reshape(B, Sq, Hq, Dh), 0, 2, 1, 3)
        k = (lambda x, n, axis: torch.repeat_interleave(x, n, dim=axis))(k_cache[:, :, Sk - W:, :], rep, axis=1)
        v = (lambda x, n, axis: torch.repeat_interleave(x, n, dim=axis))(v_cache[:, :, Sk - W:, :], rep, axis=1)
        scores = torch.einsum("bhqd,bhkd->bhqk", q, k) * (Dh ** -0.5)
        p = _softmax(scores, axis=-1)
        o = torch.einsum("bhqk,bhkd->bhqd", p, v)
        return (lambda x, *d: x.permute(*d))(o, 0, 2, 1, 3).reshape(B, Sq, Hq * Dh) @ wo

    def _B_ref(x, w1, w3, w2):
        gate = torch.einsum("bsd,df->bsf", x, w1)
        up = torch.einsum("bsd,df->bsf", x, w3)
        h = _silu(gate) * up
        out = torch.einsum("bsf,fd->bsd", h, w2)
        return out

    x = A_x
    xn = _layernorm(x, axis=-1)
    s = _A_ref(xn, A_k_cache, A_v_cache, A_wq, A_wo)
    g = _silu(_B_ref(xn, B_w1, B_w3, B_w2))
    return x + s * g
```

```python
from asmlib import *
def gen(pat, rot, mix=0):
    W = 4
    L = []
    a = L.append
    a("  s_memrealtime s[60:61]")
    a("  s_cmp_ge_u32 s2, 256")
    a("  s_cbranch_scc1 L_end")
    a("  s_load_dwordx16 s[4:19], s[0:1], 0")
    a("  s_load_dwordx8 s[20:27], s[0:1], 64")
    a("  v_lshrrev_b32 v1, 6, v0")
    a("  v_and_b32 v7, 63, v0")
    a("  v_readfirstlane_b32 s3, v1")
    a("  s_and_b32 s41, s2, 7")
    a("  s_bfe_u32 s42, s2, 0x40003")
    a("  s_lshr_b32 s43, s2, 7")
    a("  s_lshl1_add_u32 s43, s41, s43")
    a("  s_lshl_b32 s43, s43, 8")
    if pat == "il":
        a("  s_addk_i32 s43, 0xf0")
        a("  s_lshl_b32 s43, s43, 16")
        size = 1 << 20
    else:
        a("  s_add_u32 s43, s43, s42")
        a("  s_addk_i32 s43, 0xf0")
        a("  s_lshl_b32 s43, s43, 16")
        size = 65536
    if rot == "a":
        a("  s_lshr_b32 s45, s2, 3"); a("  s_add_u32 s45, s45, s2")
    elif rot == "u":
        a("  s_lshr_b32 s45, s2, 3")
    elif rot == "x":
        a("  s_lshr_b32 s45, s2, 3"); a("  s_lshl1_add_u32 s45, s41, s45")
    elif rot == "h":
        a("  s_mul_i32 s45, s2, 0x9e3779b1"); a("  s_lshr_b32 s45, s45, 28")
    elif rot == "0":
        a("  s_mov_b32 s45, 0")
    if pat in ("p1", "il"):
        a("  s_lshl_b32 s40, s3, 10"); a("  v_lshl_add_u32 v2, v7, 4, s40")
    elif pat == "p2":
        a("  s_lshl_b32 s40, s3, 12"); a("  v_lshl_add_u32 v2, v7, 4, s40")
    elif pat == "p3":
        a("  v_lshrrev_b32 v3, 4, v7"); a("  v_and_b32 v4, 15, v7"); a("  v_lshlrev_b32 v4, 4, v4")
        a("  v_lshl_add_u32 v2, v3, 12, v4"); a("  s_lshl_b32 s40, s3, 8"); a("  v_add_u32 v2, s40, v2")
    elif pat == "p4":
        a("  v_lshrrev_b32 v3, 4, v7"); a("  v_and_b32 v4, 15, v7"); a("  v_lshlrev_b32 v4, 4, v4")
        a("  v_lshl_add_u32 v2, v3, 12, v4"); a("  s_lshl_b32 s40, s3, 14"); a("  v_add_u32 v2, s40, v2")
    a("  s_waitcnt lgkmcnt(0)")
    a("  s_memrealtime s[62:63]")
    for b, p in ((28, 6), (32, 8)):
        a(f"  s_add_u32 s{b}, s{p}, s43"); a(f"  s_addc_u32 s{b+1}, s{p+1}, 0"); a(f"  s_mov_b32 s{b+2}, {size}"); a(f"  s_mov_b32 s{b+3}, 0x20000")
    if mix == 2:
        a("  s_bitcmp1_b32 s2, 3")
        a("  s_cselect_b64 s[36:37], s[32:33], s[28:29]")
        a("  s_cselect_b64 s[32:33], s[28:29], s[32:33]")
        a("  s_mov_b64 s[28:29], s[36:37]")
    for i in range(32):
        a(f"  s_add_u32 s46, s45, {i if mix != 1 else (i>>1) + 4*(i&1)}")
        a("  s_and_b32 s46, s46, 15")
        if pat == "p1":
            a("  s_lshl_b32 s70, s46, 12")
        elif pat == "il":
            a("  s_add_u32 s47, s42, s46"); a("  s_and_b32 s47, s47, 15")
            a("  s_lshl4_add_u32 s46, s46, s47"); a("  s_lshl_b32 s70, s46, 12")
        elif pat in ("p2", "p3"):
            a("  s_and_b32 s47, s46, 3"); a("  s_lshr_b32 s46, s46, 2"); a("  s_lshl4_add_u32 s46, s46, s47"); a("  s_lshl_b32 s70, s46, 10")
        elif pat == "p4":
            a("  s_lshl_b32 s70, s46, 8")
        b = 28 if i < 16 else 32
        if mix == 1:
            b = 28 if i % 2 == 0 else 32
        a(f"  buffer_load_dwordx4 v[{8+4*i}:{11+4*i}], v2, s[{b}:{b+3}], s70 offen nt")
    a("  s_memrealtime s[64:65]")
    a("  s_waitcnt vmcnt(0)")
    a("  s_memrealtime s[66:67]")
    a(f"  s_mul_i32 s73, s2, {W}")
    a("  s_add_u32 s73, s73, s3")
    a("  s_lshl_b32 s73, s73, 5")
    a("  s_add_u32 s26, s26, s73")
    a("  s_addc_u32 s27, s27, 0")
    a("  s_add_u32 s26, s26, 0x20000000")
    a("  s_addc_u32 s27, s27, 0")
    a("  s_waitcnt lgkmcnt(0)")
    a("  v_mov_b32 v1, 0")
    for i in range(4):
        a(f"  v_mov_b32 v4, s{60+2*i}")
        a(f"  v_mov_b32 v5, s{61+2*i}")
        a(f"  global_store_dwordx2 v1, v[4:5], s[26:27] offset:{8*i}")
        a("  s_nop 1")
    a("L_end:")
    a("  s_endpgm")
    return wrap("\n".join(L) + "\n", 256, 256, 0, 136, align=".p2align 12\n")
build(gen("p1","a",1),"kv_m1"); build(gen("p1","a",2),"kv_m2")
```
